```python
import torch

def _softmax(x, axis=-1):
    return torch.softmax(x, dim=axis)
def _gelu(x):
    return torch.nn.functional.gelu(x, approximate="tanh")
def _silu(x):
    return torch.nn.functional.silu(x)
def _sigmoid(x):
    return torch.sigmoid(x)
def _layernorm(x, axis=-1, eps=1e-5):
    m = x.mean(dim=axis, keepdim=True)
    v = x.var(dim=axis, keepdim=True, unbiased=False)
    return (x - m) / torch.sqrt(v + eps)
def _scatter_add(tgt, idx, src, axis=0):
    return tgt.clone().index_add_(axis, idx, src)
def _segment_sum(src, seg, n):
    out = torch.zeros((n,) + src.shape[1:], dtype=src.dtype)
    return out.index_add_(0, seg, src)
def _pad(x, pw):
    flat = tuple(v for pair in reversed(pw) for v in pair)
    return torch.nn.functional.pad(x, flat)

kernel_name = 'standalone__gqa_softmax__near_ridge'

def setup_inputs():

    _w = (lambda a: (lambda t: t.to(torch.bfloat16) if t.is_floating_point() else t)(torch.as_tensor(a)))
    B, Hq, Hkv, Sq, Sk, D = 8, 32, 8, 80, 1024, 128
    return {
        "q": _w((lambda *s: torch.randn(*s, dtype=torch.bfloat16) * 0.8)(B, Hq, Sq, D)),
        "k": _w((lambda *s: torch.randn(*s, dtype=torch.bfloat16) * 0.8)(B, Hkv, Sk, D)),
        "v": _w((lambda *s: torch.randn(*s, dtype=torch.bfloat16) * 0.05)(B, Hkv, Sk, D)),
    }

def reference(q, k, v):
    B, Hq, Sq, D = q.shape
    Hkv = k.shape[1]
    rep = Hq // Hkv
    k = (lambda x, n, axis: torch.repeat_interleave(x, n, dim=axis))(k, rep, axis=1)
    v = (lambda x, n, axis: torch.repeat_interleave(x, n, dim=axis))(v, rep, axis=1)
    scale = D ** -0.5
    scores = torch.einsum("bhqd,bhkd->bhqk", q, k) * scale
    p = _softmax(scores, axis=-1)
    return torch.einsum("bhqk,bhkd->bhqd", p, v)
```

```python
import re
from collections import defaultdict

_RNG = re.compile(r"^([vas])\[(\d+):(\d+)\]$")
_ONE = re.compile(r"^([vas])(\d+)$")
SPECIAL = ("vcc", "exec", "scc", "m0")


def regs_of(op):
    if not isinstance(op, str):
        return []
    m = _RNG.match(op)
    if m:
        return [f"{m.group(1)}{i}" for i in range(int(m.group(2)), int(m.group(3)) + 1)]
    if _ONE.match(op):
        return [op]
    if op in SPECIAL:
        return [op]
    return []


def R(kind, base, n=1):
    return f"{kind}{base}" if n == 1 else f"{kind}[{base}:{base + n - 1}]"


def v(base, n=1):
    return R("v", base, n)


def a(base, n=1):
    return R("a", base, n)


def s(base, n=1):
    return R("s", base, n)


class Inst:
    __slots__ = ("text", "cls", "r", "w", "res_r", "res_w", "srcC", "srcAB", "idx", "preds", "succs",
                 "t_issue", "pos", "label", "tag", "nop_n", "fixed")

    def __init__(self, text, cls, r=(), w=(), res_r=(), res_w=(), srcC=(), srcAB=(), tag=None):
        self.text = text
        self.cls = cls
        self.r = set(r)
        self.w = set(w)
        self.res_r = set(res_r)
        self.res_w = set(res_w)
        self.srcC = set(srcC)
        self.srcAB = set(srcAB)
        self.idx = -1
        self.preds = set()
        self.succs = set()
        self.t_issue = None
        self.pos = None
        self.label = None
        self.tag = tag
        self.nop_n = 0
        self.fixed = False

    def __repr__(self):
        return f"<{self.idx}:{self.text}>"


COST = {"mfma": 8.0, "valu": 4.0, "trans": 8.0, "permlane": 8.0, "salu": 2.4, "vmem": 9.0, "ds": 9.0,
        "branch": 4.0, "waitcnt": 2.4, "nop": 2.4, "barrier": 4.0, "sload": 4.0}
VALU_LIKE = ("valu", "trans", "permlane")


class Prog:
    def __init__(self):
        self.insts = []

    def add(self, inst):
        inst.idx = len(self.insts)
        self.insts.append(inst)
        return inst

    def op(self, mnem, dsts, srcs, cls="valu", mods="", extra_r=(), extra_w=(), **kw):
        ops = list(dsts) + list(srcs)
        text = mnem + (" " + ", ".join(str(o) for o in ops) if ops else "") + (" " + mods if mods else "")
        r = set(extra_r)
        w = set(extra_w)
        for o in srcs:
            r.update(regs_of(o))
        for o in dsts:
            w.update(regs_of(o))
        if cls in VALU_LIKE + ("mfma", "vmem", "ds"):
            r.add("exec")
        return self.add(Inst(text, cls, r, w, **kw))

    def valu(self, mnem, dst, *srcs, **kw):
        cls = "valu"
        if mnem.startswith(("v_exp_f32", "v_rcp_f32", "v_log_f32", "v_rsq_f32", "v_sqrt_f32")):
            cls = "trans"
        elif mnem.startswith("v_permlane"):
            cls = "permlane"
        dsts = dst if isinstance(dst, (list, tuple)) else [dst]
        return self.op(mnem, dsts, srcs, cls=cls, **kw)

    def salu(self, mnem, dst, *srcs, scc=True, **kw):
        dsts = [] if dst is None else (dst if isinstance(dst, (list, tuple)) else [dst])
        ew = ("scc",) if scc else ()
        return self.op(mnem, dsts, srcs, cls="salu", extra_w=ew, **kw)

    def mfma(self, dst, A, B, C):
        i = self.op("v_mfma_f32_16x16x32_bf16", [dst], [A, B, C], cls="mfma")
        i.srcC = set(regs_of(C))
        i.srcAB = set(regs_of(A)) | set(regs_of(B))
        return i

    def ds_read(self, mnem, dst, addr, offset=0, res=()):
        return self.op(mnem, [dst], [addr], cls="ds", mods=f"offset:{offset}" if offset else "", res_r=res)

    def ds_write(self, mnem, addr, data, offset=0, res=()):
        return self.op(mnem, [], [addr, data], cls="ds", mods=f"offset:{offset}" if offset else "", res_w=res)

    def dma(self, voff, srd, soff, imm, res):
        mods = "offen" + (f" offset:{imm}" if imm else "") + " lds"
        return self.op("buffer_load_dwordx4", [], [voff, srd, soff], cls="vmem", mods=mods, extra_r=("m0",), res_w=res)

    def raw(self, text, cls="salu", r=(), w=(), **kw):
        return self.add(Inst(text, cls, r, w, **kw))

    def label(self, name):
        i = self.add(Inst(name + ":", "label"))
        i.label = name
        return i

    def extend(self, other):
        for i in other.insts:
            self.add(i)


def hazard_gap(prev, cur):
    g = 0
    pc, cc = prev.cls, cur.cls
    if pc == "mfma":
        D = prev.w
        touched = (cur.r | cur.w) & D
        if touched and cc != "branch":
            if cc == "mfma":
                if cur.srcAB & D:
                    g = max(g, 8)
                if cur.srcC & D and cur.srcC != D:
                    g = max(g, 6)
            else:
                g = max(g, 8)
        if cc in VALU_LIKE and (cur.w & prev.srcC) and not (prev.srcC <= D and cur.w & D):
            g = max(g, 3)
    if pc in VALU_LIKE:
        W = prev.w
        vw = {x for x in W if x[0] in "va"}
        sw = {x for x in W if x[0] == "s" or x == "vcc"}
        if vw & cur.r:
            if cc == "mfma":
                g = max(g, 2)
            if cc == "permlane":
                g = max(g, 2)
            if cc == "valu" and pc == "trans":
                g = max(g, 1)
            if cur.text.startswith(("v_readfirstlane", "v_readlane")):
                g = max(g, 1)
        if sw & cur.r:
            if cc == "vmem":
                g = max(g, 5)
            elif cc in VALU_LIKE:
                g = max(g, 2)
            elif cc in ("salu", "branch"):
                g = max(g, 1)
        if "exec" in W:
            g = max(g, 5)
    if pc == "salu" and "m0" in prev.w and "m0" in cur.r and cc == "vmem":
        g = max(g, 1)
    if pc == "vmem" and prev.text.startswith(("buffer_store_dwordx4", "buffer_store_dwordx3", "global_store_dwordx4")):
        if prev.r & cur.w & {x for x in prev.r if x[0] in "va"}:
            g = max(g, 2)
    return g


MAXGAP = 8

LAT = {"ds": 110.0}


def build_deps(insts):
    last_w = {}
    readers = defaultdict(list)
    for i in insts:
        i.preds = set()
        i.succs = set()
    for i in insts:
        rs = set(i.r) | {("R", x) for x in i.res_r}
        ws = set(i.w) | {("R", x) for x in i.res_w}
        for x in rs:
            if x in last_w:
                i.preds.add(last_w[x])
        for x in ws:
            if x in last_w:
                i.preds.add(last_w[x])
            for rd in readers[x]:
                if rd is not i:
                    i.preds.add(rd)
        for x in rs:
            readers[x].append(i)
        for x in ws:
            last_w[x] = i
            readers[x] = []
        i.preds.discard(i)
    for i in insts:
        for p in i.preds:
            p.succs.add(i)


def schedule(insts, enable=True, verbose=False):
    build_deps(insts)
    out = []

    def gap_ok(cand):
        n = len(out)
        for back in range(1, MAXGAP + 1):
            if n - back < 0:
                break
            p = out[n - back]
            if p.cls in ("label",):
                continue
            need = hazard_gap(p, cand)
            if need > back - 1:
                return False
        return True

    def emit(inst):
        inst.pos = len(out)
        out.append(inst)

    if not enable:
        for i in insts:
            while not gap_ok(i):
                emit(Inst("s_nop 0", "nop"))
            emit(i)
        return out

    remaining = {i: len(i.preds) for i in insts}
    ready = [i for i in insts if remaining[i] == 0]
    t = 0.0
    last_mfma = -100.0
    ready_time = defaultdict(float)
    nleft = len(insts)
    while nleft:
        cands = [i for i in ready if gap_ok(i)]
        now = [i for i in cands if ready_time[i] <= t + 0.01]
        pick = None
        if now:
            mf = [i for i in now if i.cls == "mfma"]
            mem = [i for i in now if i.cls in ("ds", "vmem")]
            oth = [i for i in now if i.cls not in ("mfma", "ds", "vmem")]
            pipe_free = t >= last_mfma + 16.0 - 1.0
            if mf and pipe_free:
                pick = min(mf, key=lambda i: i.idx)
            elif mem:
                pick = min(mem, key=lambda i: i.idx)
            elif oth:
                pick = min(oth, key=lambda i: i.idx)
            else:
                pick = min(mf, key=lambda i: i.idx)
        elif cands:
            pick = min(cands, key=lambda i: (ready_time[i], i.idx))
        else:
            emit(Inst("s_nop 0", "nop"))
            t += COST["nop"]
            continue
        if pick.cls == "mfma":
            t = max(t, last_mfma + 16.0)
            last_mfma = t
        t = max(t, ready_time[pick])
        pick.t_issue = t
        emit(pick)
        t += COST.get(pick.cls, 4.0)
        ready.remove(pick)
        nleft -= 1
        for sc in pick.succs:
            lat = 0.0
            if pick.cls == "ds" and (pick.w & sc.r):
                lat = LAT["ds"]
            elif pick.cls == "mfma" and sc.cls != "mfma" and (pick.w & (sc.r | sc.w)):
                lat = 24.0
            ready_time[sc] = max(ready_time[sc], pick.t_issue + COST.get(pick.cls, 4.0) + lat)
            remaining[sc] -= 1
            if remaining[sc] == 0:
                ready.append(sc)
    if verbose:
        print(f"; scheduled {len(insts)} insts, model time {t:.0f} cycles")
    return out


def insert_waitcnts(seq, vm_init=None, lgkm_init=None):
    out = []
    vm = list(vm_init or [])
    lg = list(lgkm_init or [])

    def need(inst):
        nvm = None
        nlg = None
        rs = set(inst.r) | set(inst.w)
        for k, o in enumerate(vm):
            hit = (o.w & rs) or (o.res_w & inst.res_r) or (o.r & inst.w & {x for x in o.r if x[0] in "va"} and o.text.startswith("buffer_store"))
            if hit:
                nvm = len(vm) - 1 - k
        for k, o in enumerate(lg):
            hit = (o.w & rs) or (o.res_r & inst.res_w) or (o.res_w & inst.res_r)
            if hit:
                nlg = len(lg) - 1 - k
        return nvm, nlg

    for inst in seq:
        if inst.cls == "waitcnt":
            m = re.search(r"vmcnt\((\d+)\)", inst.text)
            if m:
                n = int(m.group(1))
                vm = vm[max(0, len(vm) - n):] if n < len(vm) else vm
            m = re.search(r"lgkmcnt\((\d+)\)", inst.text)
            if m:
                n = int(m.group(1))
                lg = lg[max(0, len(lg) - n):] if n < len(lg) else lg
            out.append(inst)
            continue
        nvm, nlg = need(inst)
        if inst.cls == "vmem" and len(vm) >= 62:
            nvm = min(nvm if nvm is not None else 99, 61)
        if inst.cls == "ds" and len(lg) >= 15:
            nlg = min(nlg if nlg is not None else 99, 14)
        if nvm is not None or nlg is not None:
            parts = []
            if nvm is not None:
                parts.append(f"vmcnt({nvm})")
                vm = vm[len(vm) - nvm:] if nvm > 0 else []
            if nlg is not None:
                parts.append(f"lgkmcnt({nlg})")
                lg = lg[len(lg) - nlg:] if nlg > 0 else []
            out.append(Inst("s_waitcnt " + " ".join(parts), "waitcnt"))
        out.append(inst)
        if inst.cls == "vmem":
            vm.append(inst)
        elif inst.cls == "ds":
            lg.append(inst)
    return out, vm, lg


def fix_hazards(seq):
    out = []
    for inst in seq:
        while True:
            ok = True
            for back in range(1, MAXGAP + 1):
                if len(out) - back < 0:
                    break
                p = out[len(out) - back]
                if p.cls == "label":
                    continue
                wait = back - 1
                if hazard_gap(p, inst) > wait:
                    ok = False
                    break
            if ok:
                break
            out.append(Inst("s_nop 0", "nop"))
        out.append(inst)
    return out


def render(seq):
    lines = []
    for i in seq:
        if i.cls == "label":
            lines.append(i.text)
        else:
            lines.append("    " + i.text)
    return "\n".join(lines) + "\n"
```

```python
import sys, math, struct
sys.path.insert(0, "gen")
from asmlib import *

SCHED = "--nosched" not in sys.argv
KNAME = "standalone__gqa_softmax__near_ridge_kernel"

C_SCALE = math.log2(math.e) / math.sqrt(128.0)
T_LAZY = 8.0


def fbits(x):
    return struct.unpack("<I", struct.pack("<f", x))[0]


NBLK = 8
QBYTES = 20480
WAVE_LDS = 35840
Q_LDS = 0
WBASE0 = 20480
LDS_TOTAL = WBASE0 + 4 * WAVE_LDS

class Alloc:
    def __init__(self, start):
        self.p = start

    def get(self, n=1, al=1):
        self.p = (self.p + al - 1) // al * al
        b = self.p
        self.p += n
        return b


va = Alloc(1)
V_LANE = va.get()
V_G = va.get()
V_M = va.get()
V_T0 = va.get()
V_T1 = va.get()
V_T2 = va.get()
V_WAVE = va.get()
V_VOFF = va.get(4, 4)
V_KADDR = va.get(4, 4)
V_VADDR = va.get(8, 4)
V_ONES = va.get(4, 4)
V_L = va.get(20, 4)
V_MX = va.get(5)
V_MC = va.get(5)
V_THR = va.get(5)
V_TMAX = va.get(5)
V_X0 = va.get(2, 2)
V_AL = va.get(1)
V_TMP = va.get(4, 4)
V_S = [va.get(40, 4), va.get(40, 4)]
V_KF = [va.get(4, 4) for _ in range(4)]
V_VF = [va.get(4, 4) for _ in range(4)]
V_QAD = va.get(4, 4)
V_QD = va.get(1)
V_END = va.p
assert V_END <= 256, V_END
A_O = 0
A_Q = 160

S_PTR = 4
SRD_Q, SRD_K, SRD_V, SRD_O = 12, 16, 20, 24
S_WAVE, S_WBASE, S_C, S_TC, S_KEYB = 28, 29, 30, 31, 32
S_T = [33, 34, 35, 36, 37, 38, 39, 40, 41]
S_CMP = 44


def Oreg(tq, t):
    return a(A_O + (tq * 8 + t) * 4, 4)


def Qreg(tq, j):
    return a(A_Q + (tq * 4 + j) * 4, 4)


def Sreg(b, tq, u):
    return v(V_S[b] + tq * 8 + u * 4, 4)


def Preg(b, tq):
    return v(V_S[b] + tq * 8, 4)


def Lreg(tq):
    return v(V_L + tq * 4, 4)


def kslot(i):
    return 2 * (i & 1)


def vslot(i):
    return 2 * (i & 1) + 1


def res(slot, u):
    return f"S{slot}h{u}"


def gen_prologue():
    p = Prog()
    p.raw("s_cmp_ge_u32 s2, 256", "salu", r=["s2"], w=["scc"])
    p.raw("s_cbranch_scc1 L_end", "branch", r=["scc"])
    p.op("s_load_dwordx8", [s(4, 8)], [s(0, 2), 0], cls="sload")
    p.salu("s_and_b32", s(33), s(2), 7)
    p.salu("s_lshl_b32", s(33), s(33), 3)
    p.salu("s_lshr_b32", s(34), s(2), 5)
    p.salu("s_add_u32", s(33), s(33), s(34))
    p.salu("s_lshr_b32", s(34), s(2), 3)
    p.salu("s_and_b32", s(34), s(34), 3)
    p.salu("s_lshl_b32", s(35), s(33), 2)
    p.salu("s_add_u32", s(35), s(35), s(34))
    p.salu("s_mul_i32", s(36), s(35), QBYTES, scc=False)
    p.salu("s_lshl_b32", s(37), s(33), 18)
    p.valu("v_and_b32", v(V_LANE), 63, v(0))
    p.valu("v_lshrrev_b32", v(V_WAVE), 6, v(0))
    p.valu("v_lshrrev_b32", v(V_G), 4, v(V_LANE))
    p.valu("v_and_b32", v(V_M), 15, v(V_LANE))
    p.op("v_readfirstlane_b32", [s(S_WAVE)], [v(V_WAVE)])
    p.salu("s_mov_b32", s(S_C), hex(fbits(C_SCALE)), scc=False)
    p.salu("s_mov_b32", s(S_TC), hex(fbits(T_LAZY / C_SCALE)), scc=False)
    p.salu("s_mul_i32", s(S_WBASE), s(S_WAVE), WAVE_LDS, scc=False)
    p.salu("s_add_u32", s(S_WBASE), s(S_WBASE), WBASE0)
    p.salu("s_lshl_b32", s(S_KEYB), s(S_WAVE), 16)
    for n in range(4):
        p.valu("v_add_u32", v(V_T0), 4 * n, v(V_G))
        p.valu("v_and_b32", v(V_T0), 15, v(V_T0))
        p.valu("v_xor_b32", v(V_T0), v(V_M), v(V_T0))
        p.valu("v_lshlrev_b32", v(V_T0), 4, v(V_T0))
        p.valu("v_lshl_add_u32", v(V_VOFF + n), v(V_G), 8, v(V_T0))
    for j in range(4):
        p.valu("v_add_u32", v(V_T0), 4 * j, v(V_G))
        p.valu("v_xor_b32", v(V_T0), v(V_M), v(V_T0))
        p.valu("v_lshlrev_b32", v(V_T0), 4, v(V_T0))
        p.valu("v_lshl_add_u32", v(V_QAD + j), v(V_M), 8, v(V_T0))
        p.valu("v_add_u32", v(V_KADDR + j), s(S_WBASE), v(V_QAD + j))
    p.valu("v_lshrrev_b32", v(V_T0), 2, v(V_M))
    p.valu("v_lshl_add_u32", v(V_T0), v(V_G), 2, v(V_T0))
    p.valu("v_and_b32", v(V_T1), 3, v(V_LANE))
    p.valu("v_lshlrev_b32", v(V_T2), 2, v(V_T1))
    p.valu("v_xor_b32", v(V_T2), v(V_T2), v(V_T0))
    p.valu("v_lshlrev_b32", v(V_T2), 4, v(V_T2))
    p.valu("v_lshl_add_u32", v(V_T2), v(V_T0), 8, v(V_T2))
    p.valu("v_and_b32", v(V_T1), 1, v(V_T1))
    p.valu("v_lshl_add_u32", v(V_T2), v(V_T1), 3, v(V_T2))
    for t in range(8):
        cst = ((t >> 1) << 4) | ((t & 1) << 3)
        p.valu("v_xor_b32", v(V_T1), cst, v(V_T2))
        p.valu("v_add_u32", v(V_VADDR + t), s(S_WBASE), v(V_T1))
    for k in range(4):
        p.valu("v_mov_b32", v(V_ONES + k), "0x3f803f80")
    p.valu("v_lshl_add_u32", v(V_T0), v(V_WAVE), 2, v(V_G))
    p.valu("v_and_b32", v(V_T0), 15, v(V_T0))
    p.valu("v_xor_b32", v(V_T0), v(V_M), v(V_T0))
    p.valu("v_lshlrev_b32", v(V_T0), 4, v(V_T0))
    p.valu("v_lshl_add_u32", v(V_QD), v(V_G), 8, v(V_T0))
    p.raw("s_waitcnt lgkmcnt(0)", "waitcnt")
    for (srd, ptr, off, nb) in ((SRD_Q, 4, 36, QBYTES), (SRD_K, 6, 37, 262144), (SRD_V, 8, 37, 262144), (SRD_O, 10, 36, QBYTES)):
        p.salu("s_add_u32", s(srd), s(ptr), s(off))
        p.salu("s_addc_u32", s(srd + 1), s(ptr + 1), 0, extra_r=("scc",))
        p.salu("s_mov_b32", s(srd + 2), nb, scc=False)
        p.salu("s_mov_b32", s(srd + 3), "0x00020000", scc=False)
    p.salu("s_lshl_b32", s(33), s(S_WAVE), 10)
    for k in range(5):
        p.salu("s_add_u32", s(34), s(33), 4096 * k)
        p.salu("s_mov_b32", "m0", s(34), scc=False)
        p.raw("s_nop 0", "nop")
        p.dma(v(V_QD), s(SRD_Q, 4), s(34), 0, ["Q"])
    for i in range(2):
        gen_dma(p, "K", i)
        gen_dma(p, "V", i)
    p.raw("s_waitcnt vmcnt(32)", "waitcnt")
    p.raw("s_barrier", "barrier")
    return p


def gen_dma(p, which, i):
    slot = kslot(i) if which == "K" else vslot(i)
    srd = SRD_K if which == "K" else SRD_V
    for h in range(2):
        st = S_T[2 + (slot * 2 + h) % 6]
        p.salu("s_add_u32", s(st), s(S_KEYB), i * 8192 + h * 4096)
        p.salu("s_add_u32", "m0", s(S_WBASE), slot * 8192 + h * 4096)
        for n in range(4):
            p.dma(v(V_VOFF + n), s(srd, 4), s(st), n * 1024, [res(slot, h)])


def gen_qfrag(p):
    for tq in range(5):
        for j in range(4):
            p.ds_read("ds_read_b128", Qreg(tq, j), v(V_QAD + j), Q_LDS + tq * 4096, res=["Q"])


kf_rot = [0]
vf_rot = [0]


def gen_qk(p, i):
    b = i & 1
    slot = kslot(i)
    for u in range(2):
        for j in range(4):
            fr = v(V_KF[kf_rot[0] % 4], 4)
            kf_rot[0] += 1
            p.ds_read("ds_read_b128", fr, v(V_KADDR + j), slot * 8192 + u * 4096, res=[res(slot, u)])
            for tq in range(5):
                p.mfma(Sreg(b, tq, u), fr, Qreg(tq, j), 0 if j == 0 else Sreg(b, tq, u))


def gen_max(p, i):
    b = i & 1
    for tq in range(5):
        x = V_S[b] + tq * 8
        t = v(V_TMAX + tq)
        p.valu("v_max3_f32", t, v(x), v(x + 1), v(x + 2))
        p.valu("v_max3_f32", t, t, v(x + 3), v(x + 4))
        p.valu("v_max3_f32", t, t, v(x + 5), v(x + 6))
        p.valu("v_max_f32", t, t, v(x + 7))


def slow_regs():
    r = []
    for tq in range(5):
        r += [f"v{V_MX + tq}", f"v{V_MC + tq}", f"v{V_THR + tq}"] + regs_of(Lreg(tq))
    r += regs_of(a(A_O, 160))
    return r


def gen_check(p, i):
    for tq in range(5):
        p.op("v_cmp_gt_f32", [s(S_CMP + 2 * tq, 2)], [v(V_TMAX + tq), v(V_THR + tq)])
    for tq in range(1, 5):
        p.salu("s_or_b64", s(S_CMP, 2), s(S_CMP, 2), s(S_CMP + 2 * tq, 2))
    sr = slow_regs()
    p.raw(f"s_cbranch_scc1 L_slow{i}\nL_ret{i}:", "branch",
          r=["scc"] + sr + [f"v{V_TMAX + tq}" for tq in range(5)] + [f"v{V_X0}", f"v{V_X0 + 1}", f"v{V_AL}"] + regs_of(v(V_TMP, 4)),
          w=sr + [f"v{V_X0}", f"v{V_X0 + 1}", f"v{V_AL}"] + regs_of(v(V_TMP, 4)))


def gen_xlane_max(p, src, dst):
    x0, x1 = v(V_X0), v(V_X0 + 1)
    p.valu("v_mov_b32", x0, src)
    p.valu("v_mov_b32", x1, src)
    p.op("v_permlane32_swap_b32", [x0, x1], [], cls="permlane", extra_r=regs_of(x0) + regs_of(x1))
    p.valu("v_max_f32", x0, x0, x1)
    p.valu("v_mov_b32", x1, x0)
    p.op("v_permlane16_swap_b32", [x0, x1], [], cls="permlane", extra_r=regs_of(x0) + regs_of(x1))
    p.valu("v_max_f32", dst, x0, x1)


def gen_init_stats(p):
    for tq in range(5):
        gen_xlane_max(p, v(V_TMAX + tq), v(V_MX + tq))
        p.valu("v_mul_f32", v(V_MC + tq), s(S_C), v(V_MX + tq))
        p.valu("v_sub_f32", v(V_MC + tq), 0, v(V_MC + tq))
        p.valu("v_add_f32", v(V_THR + tq), s(S_TC), v(V_MX + tq))


def gen_slow(i):
    p = Prog()
    p.label(f"L_slow{i}")
    p.raw("s_nop 7", "nop")
    p.raw("s_nop 7", "nop")
    for tq in range(5):
        gen_xlane_max(p, v(V_TMAX + tq), v(V_TMAX + tq))
        mo = v(V_MX + tq)
        p.valu("v_max_f32", v(V_TMAX + tq), mo, v(V_TMAX + tq))
        p.valu("v_sub_f32", v(V_AL), mo, v(V_TMAX + tq))
        p.valu("v_mul_f32", v(V_AL), s(S_C), v(V_AL))
        p.valu("v_exp_f32", v(V_AL), v(V_AL))
        p.valu("v_mov_b32", mo, v(V_TMAX + tq))
        p.valu("v_mul_f32", v(V_MC + tq), s(S_C), mo)
        p.valu("v_sub_f32", v(V_MC + tq), 0, v(V_MC + tq))
        p.valu("v_add_f32", v(V_THR + tq), s(S_TC), mo)
        for k in range(4):
            p.valu("v_mul_f32", v(V_L + tq * 4 + k), v(V_AL), v(V_L + tq * 4 + k))
        for t in range(8):
            for k in range(4):
                ar = a(A_O + (tq * 8 + t) * 4 + k)
                tmp = v(V_TMP + k)
                p.valu("v_accvgpr_read_b32", tmp, ar)
                p.valu("v_mul_f32", tmp, v(V_AL), tmp)
                p.valu("v_accvgpr_write_b32", ar, tmp)
    p.raw("s_nop 3", "nop")
    p.raw(f"s_branch L_ret{i}", "branch")
    return p


def gen_exp(p, i):
    b = i & 1
    for tq in range(5):
        x = V_S[b] + tq * 8
        for k in range(8):
            p.valu("v_fma_f32", v(x + k), v(x + k), s(S_C), v(V_MC + tq))
            p.valu("v_exp_f32", v(x + k), v(x + k))
        for k in range(4):
            p.valu("v_cvt_pk_bf16_f32", v(x + k), v(x + 2 * k), v(x + 2 * k + 1))


def gen_pv(p, i):
    b = i & 1
    slot = vslot(i)
    for t in range(8):
        fb = V_VF[vf_rot[0] % 4]
        vf_rot[0] += 1
        for u in range(2):
            p.ds_read("ds_read_b64_tr_b16", v(fb + 2 * u, 2), v(V_VADDR + t), slot * 8192 + u * 4096, res=[res(slot, u)])
        for tq in range(5):
            p.mfma(Oreg(tq, t), v(fb, 4), Preg(b, tq), 0 if i == 0 else Oreg(tq, t))
    for tq in range(5):
        p.mfma(Lreg(tq), v(V_ONES, 4), Preg(b, tq), 0 if i == 0 else Lreg(tq))


def gen_main():
    p = Prog()
    gen_qfrag(p)
    gen_qk(p, 0)
    gen_dma(p, "K", 2)
    gen_max(p, 0)
    gen_init_stats(p)
    for i in range(NBLK):
        gen_exp(p, i)
        if i + 1 < NBLK:
            gen_qk(p, i + 1)
        gen_pv(p, i)
        if i + 3 < NBLK:
            gen_dma(p, "K", i + 3)
        if i + 2 < NBLK:
            gen_dma(p, "V", i + 2)
        if i + 1 < NBLK:
            gen_max(p, i + 1)
            gen_check(p, i + 1)
    return p


STAT_OFF = 32768


def wbase(w):
    return WBASE0 + w * WAVE_LDS


def unit_idx(w, tq, t):
    others = [x for x in range(8) if (x >> 1) != w]
    return tq * 6 + others.index(t)


def gen_epilogue_common():
    p = Prog()
    p.raw("s_nop 7", "nop")
    p.raw("s_nop 7", "nop")
    E = V_S[0]
    p.valu("v_lshlrev_b32", v(E), 4, v(V_LANE))
    p.valu("v_lshlrev_b32", v(E + 1), 3, v(V_M))
    p.valu("v_add_u32", v(E + 1), s(S_WBASE), v(E + 1))
    for tq in range(5):
        p.valu("v_mov_b32", v(E + 2), v(V_MX + tq))
        p.valu("v_mov_b32", v(E + 3), v(V_L + tq * 4))
        p.ds_write("ds_write_b64", v(E + 1), v(E + 2, 2), STAT_OFF + tq * 128)
    for w in range(1, 4):
        p.raw(f"s_cmp_eq_u32 s{S_WAVE}, {w}", "salu", r=[f"s{S_WAVE}"], w=["scc"])
        p.raw(f"s_cbranch_scc1 L_epi{w}", "branch", r=["scc"])
    return p


def gen_epilogue_wave(w):
    p = Prog()
    p.label(f"L_epi{w}")
    E = V_S[0]
    vl16 = v(E)
    p.valu("v_add_u32", v(E + 4), wbase(w), vl16)
    for tq in range(5):
        for t in range(8):
            if (t >> 1) == w:
                continue
            p.ds_write("ds_write_b128", v(E + 4), Oreg(tq, t), unit_idx(w, tq, t) * 1024)
    p.raw("s_waitcnt lgkmcnt(0)", "waitcnt")
    p.raw("s_barrier", "barrier")
    ST = E + 8
    SC = E + 16
    for tq in range(5):
        for w2 in range(4):
            p.valu("v_lshlrev_b32", v(E + 5), 3, v(V_M))
            p.valu("v_add_u32", v(E + 5), wbase(w2) + STAT_OFF + tq * 128, v(E + 5))
            p.ds_read("ds_read_b64", v(ST + 2 * w2, 2), v(E + 5))
        M = v(E + 6)
        p.valu("v_max_f32", M, v(ST), v(ST + 2))
        p.valu("v_max3_f32", M, M, v(ST + 4), v(ST + 6))
        Ls = v(E + 7)
        for w2 in range(4):
            sc = v(SC + w2 * 5 + tq)
            p.valu("v_sub_f32", sc, v(ST + 2 * w2), M)
            p.valu("v_mul_f32", sc, s(S_C), sc)
            p.valu("v_exp_f32", sc, sc)
            if w2 == 0:
                p.valu("v_mul_f32", Ls, sc, v(ST + 1))
            else:
                p.valu("v_fma_f32", Ls, sc, v(ST + 2 * w2 + 1), Ls)
        p.valu("v_rcp_f32", Ls, Ls)
        for w2 in range(4):
            sc = v(SC + w2 * 5 + tq)
            p.valu("v_mul_f32", sc, sc, Ls)
    ACC = E + 40
    SRC = E + 44
    AD = E + 52
    for k, t in enumerate((2 * w, 2 * w + 1)):
        p.valu("v_and_b32", v(E + 5), 1, v(V_G))
        p.valu("v_xor_b32", v(E + 5), t, v(E + 5))
        p.valu("v_lshlrev_b32", v(E + 5), 3, v(E + 5))
        p.valu("v_lshl_add_u32", v(E + 5), v(V_G), 6, v(E + 5))
        p.valu("v_lshl_add_u32", v(AD + k), v(V_M), 8, v(E + 5))
    cnt = 0
    for tq in range(5):
        for k, t in enumerate((2 * w, 2 * w + 1)):
            first = True
            for w2 in range(4):
                sc = v(SC + w2 * 5 + tq)
                src = SRC + 4 * (cnt % 2)
                cnt += 1
                if w2 == w:
                    for r in range(4):
                        p.valu("v_accvgpr_read_b32", v(src + r), a(A_O + (tq * 8 + t) * 4 + r))
                else:
                    p.valu("v_add_u32", v(E + 5), wbase(w2), vl16)
                    p.ds_read("ds_read_b128", v(src, 4), v(E + 5), unit_idx(w2, tq, t) * 1024)
                for r in range(4):
                    if first:
                        p.valu("v_mul_f32", v(ACC + r), sc, v(src + r))
                    else:
                        p.valu("v_fma_f32", v(ACC + r), sc, v(src + r), v(ACC + r))
                first = False
            p.valu("v_cvt_pk_bf16_f32", v(ACC), v(ACC), v(ACC + 1))
            p.valu("v_cvt_pk_bf16_f32", v(ACC + 1), v(ACC + 2), v(ACC + 3))
            p.salu("s_mov_b32", s(S_T[0]), tq * 4096, scc=False)
            p.op("buffer_store_dwordx2", [], [v(ACC, 2), v(AD + k), s(SRD_O, 4), s(S_T[0])], cls="vmem", mods="offen")
    p.raw("s_waitcnt vmcnt(0)", "waitcnt")
    p.raw("s_branch L_end", "branch")
    return p


def finish(seq, vm=None, lg=None):
    seq, vm, lg = insert_waitcnts(seq, vm, lg)
    seq = fix_hazards(seq)
    return seq, vm, lg


def main():
    out = []
    out.append(f"; @launch grid=(256,1,1) block=(256,1,1) lds={LDS_TOTAL}\n")
    out.append('.amdgcn_target "amdgcn-amd-amdhsa--gfx950"\n.text\n')
    out.append(f".globl {KNAME}\n.p2align 8\n.type {KNAME},@function\n{KNAME}:\n")
    pro = gen_prologue()
    seq = schedule(pro.insts, enable=False)
    seq, vm, lg = finish(seq)
    out.append(render(seq))
    mainp = gen_main()
    seq = schedule(mainp.insts, enable=SCHED, verbose=True)
    seq, vm, lg = finish(seq, vm, lg)
    out.append(render(seq))
    seq = schedule(gen_epilogue_common().insts, enable=False)
    seq = [Inst("s_waitcnt vmcnt(0) lgkmcnt(0)", "waitcnt")] + seq
    seq, _, _ = finish(seq)
    out.append(render(seq))
    for w in range(4):
        seq = schedule(gen_epilogue_wave(w).insts, enable=False)
        seq = [Inst("s_waitcnt lgkmcnt(0)", "waitcnt")] + seq
        lab = [i for i in seq if i.cls == "label"]
        rest = [i for i in seq if i.cls != "label"]
        seq, _, _ = finish(lab + rest)
        out.append(render(seq))
    for i in range(1, NBLK):
        seq = schedule(gen_slow(i).insts, enable=False)
        seq, _, _ = finish(seq)
        out.append(render(seq))
    out.append("L_end:\n    s_endpgm\n")
    out.append(f""".section .rodata,"a"
.p2align 6
.amdhsa_kernel {KNAME}
  .amdhsa_next_free_vgpr 512
  .amdhsa_next_free_sgpr 64
  .amdhsa_accum_offset 256
  .amdhsa_group_segment_fixed_size 0
  .amdhsa_kernarg_size 48
  .amdhsa_user_sgpr_count 2
  .amdhsa_user_sgpr_kernarg_segment_ptr 1
  .amdhsa_system_sgpr_workgroup_id_x 1
.end_amdhsa_kernel
""")
    dst = "standalone__gqa_softmax__near_ridge.s"
    for a_ in sys.argv[1:]:
        if a_.startswith("--out="):
            dst = a_[6:]
    open(dst, "w").write("".join(out))
    print("wrote", dst, "V_END", V_END)


if __name__ == "__main__":
    main()
```

```python
import sys, math, struct
sys.path.insert(0, "gen")
from asmlib import *

SCHED = "--nosched" not in sys.argv
STAMP = "--stamp" in sys.argv
stamp_n = [0]
KNAME = "standalone__gqa_softmax__near_ridge_kernel"

C_SCALE = math.log2(math.e) / math.sqrt(128.0)
T_LAZY = 8.0


def fbits(x):
    return struct.unpack("<I", struct.pack("<f", x))[0]


NBLK = 8
QBYTES = 20480
WAVE_LDS = 35840
Q_LDS = 0
WBASE0 = 20480
LDS_TOTAL = WBASE0 + 4 * WAVE_LDS

class Alloc:
    def __init__(self, start):
        self.p = start

    def get(self, n=1, al=1):
        self.p = (self.p + al - 1) // al * al
        b = self.p
        self.p += n
        return b


va = Alloc(1)
V_LANE = va.get()
V_G = va.get()
V_M = va.get()
V_T0 = va.get()
V_T1 = va.get()
V_T2 = va.get()
V_WAVE = va.get()
V_VOFF = va.get(4, 4)
V_KADDR = va.get(4, 4)
V_VADDR = va.get(8, 4)
V_ONES = va.get(4, 4)
V_L = va.get(20, 4)
V_MX = va.get(5)
V_MC = va.get(5)
V_THR = va.get(5)
V_TMAX = va.get(5)
V_X0 = va.get(2, 2)
V_AL = va.get(1)
V_TMP = va.get(4, 4)
V_S = [va.get(40, 4), va.get(40, 4)]
V_KF = [va.get(4, 4) for _ in range(4)]
V_VF = [va.get(4, 4) for _ in range(4)]
V_QAD = va.get(4, 4)
V_QD = va.get(1)
V_END = va.p
assert V_END <= 256, V_END
A_O = 0
A_Q = 160

S_PTR = 4
SRD_Q, SRD_K, SRD_V, SRD_O = 12, 16, 20, 24
S_WAVE, S_WBASE, S_C, S_TC, S_KEYB = 28, 29, 30, 31, 32
S_T = [33, 34, 35, 36, 37, 38, 39, 40, 41]
S_CMP = 44


def Oreg(tq, t):
    return a(A_O + (tq * 8 + t) * 4, 4)


def Qreg(tq, j):
    return a(A_Q + (tq * 4 + j) * 4, 4)


def Sreg(b, tq, u):
    return v(V_S[b] + tq * 8 + u * 4, 4)


def Preg(b, tq):
    return v(V_S[b] + tq * 8, 4)


def Lreg(tq):
    return v(V_L + tq * 4, 4)


def kslot(i):
    return 2 * (i & 1)


def vslot(i):
    return 2 * (i & 1) + 1


def res(slot, u):
    return f"S{slot}h{u}"


def gen_prologue():
    p = Prog()
    p.raw("s_cmp_ge_u32 s2, 256", "salu", r=["s2"], w=["scc"])
    p.raw("s_cbranch_scc1 L_end", "branch", r=["scc"])
    p.op("s_load_dwordx8", [s(4, 8)], [s(0, 2), 0], cls="sload")
    p.salu("s_and_b32", s(33), s(2), 7)
    p.salu("s_lshl_b32", s(33), s(33), 3)
    p.salu("s_lshr_b32", s(34), s(2), 5)
    p.salu("s_add_u32", s(33), s(33), s(34))
    p.salu("s_lshr_b32", s(34), s(2), 3)
    p.salu("s_and_b32", s(34), s(34), 3)
    p.salu("s_lshl_b32", s(35), s(33), 2)
    p.salu("s_add_u32", s(35), s(35), s(34))
    p.salu("s_mul_i32", s(36), s(35), QBYTES, scc=False)
    p.salu("s_lshl_b32", s(37), s(33), 18)
    p.valu("v_and_b32", v(V_LANE), 63, v(0))
    p.valu("v_lshrrev_b32", v(V_WAVE), 6, v(0))
    p.valu("v_lshrrev_b32", v(V_G), 4, v(V_LANE))
    p.valu("v_and_b32", v(V_M), 15, v(V_LANE))
    p.op("v_readfirstlane_b32", [s(S_WAVE)], [v(V_WAVE)])
    p.salu("s_mov_b32", s(S_C), hex(fbits(C_SCALE)), scc=False)
    p.salu("s_mov_b32", s(S_TC), hex(fbits(T_LAZY / C_SCALE)), scc=False)
    p.salu("s_mul_i32", s(S_WBASE), s(S_WAVE), WAVE_LDS, scc=False)
    p.salu("s_add_u32", s(S_WBASE), s(S_WBASE), WBASE0)
    p.salu("s_lshl_b32", s(S_KEYB), s(S_WAVE), 16)
    for n in range(4):
        p.valu("v_add_u32", v(V_T0), 4 * n, v(V_G))
        p.valu("v_and_b32", v(V_T0), 15, v(V_T0))
        p.valu("v_xor_b32", v(V_T0), v(V_M), v(V_T0))
        p.valu("v_lshlrev_b32", v(V_T0), 4, v(V_T0))
        p.valu("v_lshl_add_u32", v(V_VOFF + n), v(V_G), 8, v(V_T0))
    for j in range(4):
        p.valu("v_add_u32", v(V_T0), 4 * j, v(V_G))
        p.valu("v_xor_b32", v(V_T0), v(V_M), v(V_T0))
        p.valu("v_lshlrev_b32", v(V_T0), 4, v(V_T0))
        p.valu("v_lshl_add_u32", v(V_QAD + j), v(V_M), 8, v(V_T0))
        p.valu("v_add_u32", v(V_KADDR + j), s(S_WBASE), v(V_QAD + j))
    p.valu("v_lshrrev_b32", v(V_T0), 2, v(V_M))
    p.valu("v_lshl_add_u32", v(V_T0), v(V_G), 2, v(V_T0))
    p.valu("v_and_b32", v(V_T1), 3, v(V_LANE))
    p.valu("v_lshlrev_b32", v(V_T2), 2, v(V_T1))
    p.valu("v_xor_b32", v(V_T2), v(V_T2), v(V_T0))
    p.valu("v_lshlrev_b32", v(V_T2), 4, v(V_T2))
    p.valu("v_lshl_add_u32", v(V_T2), v(V_T0), 8, v(V_T2))
    p.valu("v_and_b32", v(V_T1), 1, v(V_T1))
    p.valu("v_lshl_add_u32", v(V_T2), v(V_T1), 3, v(V_T2))
    for t in range(8):
        cst = ((t >> 1) << 4) | ((t & 1) << 3)
        p.valu("v_xor_b32", v(V_T1), cst, v(V_T2))
        p.valu("v_add_u32", v(V_VADDR + t), s(S_WBASE), v(V_T1))
    for k in range(4):
        p.valu("v_mov_b32", v(V_ONES + k), "0x3f803f80")
    p.valu("v_lshl_add_u32", v(V_T0), v(V_WAVE), 2, v(V_G))
    p.valu("v_and_b32", v(V_T0), 15, v(V_T0))
    p.valu("v_xor_b32", v(V_T0), v(V_M), v(V_T0))
    p.valu("v_lshlrev_b32", v(V_T0), 4, v(V_T0))
    p.valu("v_lshl_add_u32", v(V_QD), v(V_G), 8, v(V_T0))
    p.raw("s_waitcnt lgkmcnt(0)", "waitcnt")
    for (srd, ptr, off, nb) in ((SRD_Q, 4, 36, QBYTES), (SRD_K, 6, 37, 262144), (SRD_V, 8, 37, 262144), (SRD_O, 10, 36, QBYTES)):
        p.salu("s_add_u32", s(srd), s(ptr), s(off))
        p.salu("s_addc_u32", s(srd + 1), s(ptr + 1), 0, extra_r=("scc",))
        p.salu("s_mov_b32", s(srd + 2), nb, scc=False)
        p.salu("s_mov_b32", s(srd + 3), "0x00020000", scc=False)
    if STAMP:
        p.op("s_load_dwordx2", [s(60, 2)], [s(0, 2), 40], cls="sload")
        p.raw("s_waitcnt lgkmcnt(0)", "waitcnt")
        p.salu("s_mov_b32", s(62), "0x10000000", scc=False)
        p.salu("s_mov_b32", s(63), "0x00020000", scc=False)
        p.salu("s_lshl_b32", s(58), s(2), 2)
        p.salu("s_add_u32", s(58), s(58), s(S_WAVE))
        p.salu("s_lshl_b32", s(58), s(58), 8)
        p.valu("v_mov_b32", "v253", s(58))
        gen_stamp(p)
    p.salu("s_lshl_b32", s(33), s(S_WAVE), 10)
    for k in range(5):
        p.salu("s_add_u32", s(34), s(33), 4096 * k)
        p.salu("s_mov_b32", "m0", s(34), scc=False)
        p.raw("s_nop 0", "nop")
        p.dma(v(V_QD), s(SRD_Q, 4), s(34), 0, ["Q"])
    for i in range(2):
        gen_dma(p, "K", i)
        gen_dma(p, "V", i)
    p.raw("s_waitcnt vmcnt(32)" if not STAMP else "s_waitcnt vmcnt(0)", "waitcnt")
    p.raw("s_barrier", "barrier")
    gen_stamp(p)
    return p


def gen_stamp(p):
    if not STAMP:
        return
    n = stamp_n[0]
    stamp_n[0] += 1
    p.raw("s_memtime s[56:57]", "salu", r=["scc"], w=["s56", "s57"])
    p.raw("s_waitcnt lgkmcnt(0)", "stampwait", r=["s56", "s57"], w=["s56", "s57"])
    p.raw("v_mov_b32 v254, s56", "valu", r=["s56"], w=["v254"])
    p.raw("v_mov_b32 v255, s57", "valu", r=["s57"], w=["v255"])
    p.raw(f"buffer_store_dwordx2 v[254:255], v253, s[60:63], 0 offen offset:{n*8}", "vmem", r=["v254", "v255", "v253"])


def gen_dma(p, which, i):
    slot = kslot(i) if which == "K" else vslot(i)
    srd = SRD_K if which == "K" else SRD_V
    for h in range(2):
        st = S_T[2 + (slot * 2 + h) % 6]
        p.salu("s_add_u32", s(st), s(S_KEYB), i * 8192 + h * 4096)
        p.salu("s_add_u32", "m0", s(S_WBASE), slot * 8192 + h * 4096)
        for n in range(4):
            p.dma(v(V_VOFF + n), s(srd, 4), s(st), n * 1024, [res(slot, h)])


def gen_qfrag(p):
    for tq in range(5):
        for j in range(4):
            p.ds_read("ds_read_b128", Qreg(tq, j), v(V_QAD + j), Q_LDS + tq * 4096, res=["Q"])


kf_rot = [0]
vf_rot = [0]


def gen_qk(p, i):
    b = i & 1
    slot = kslot(i)
    for u in range(2):
        for j in range(4):
            fr = v(V_KF[kf_rot[0] % 4], 4)
            kf_rot[0] += 1
            p.ds_read("ds_read_b128", fr, v(V_KADDR + j), slot * 8192 + u * 4096, res=[res(slot, u)])
            for tq in range(5):
                p.mfma(Sreg(b, tq, u), fr, Qreg(tq, j), 0 if j == 0 else Sreg(b, tq, u))


def gen_max(p, i):
    b = i & 1
    for tq in range(5):
        x = V_S[b] + tq * 8
        t = v(V_TMAX + tq)
        p.valu("v_max3_f32", t, v(x), v(x + 1), v(x + 2))
        p.valu("v_max3_f32", t, t, v(x + 3), v(x + 4))
        p.valu("v_max3_f32", t, t, v(x + 5), v(x + 6))
        p.valu("v_max_f32", t, t, v(x + 7))


def slow_regs():
    r = []
    for tq in range(5):
        r += [f"v{V_MX + tq}", f"v{V_MC + tq}", f"v{V_THR + tq}"] + regs_of(Lreg(tq))
    r += regs_of(a(A_O, 160))
    return r


def gen_check(p, i):
    for tq in range(5):
        p.op("v_cmp_gt_f32", [s(S_CMP + 2 * tq, 2)], [v(V_TMAX + tq), v(V_THR + tq)])
    for tq in range(1, 5):
        p.salu("s_or_b64", s(S_CMP, 2), s(S_CMP, 2), s(S_CMP + 2 * tq, 2))
    sr = slow_regs()
    p.raw(f"s_cbranch_scc1 L_slow{i}\nL_ret{i}:", "branch",
          r=["scc"] + sr + [f"v{V_TMAX + tq}" for tq in range(5)] + [f"v{V_X0}", f"v{V_X0 + 1}", f"v{V_AL}"] + regs_of(v(V_TMP, 4)),
          w=sr + [f"v{V_X0}", f"v{V_X0 + 1}", f"v{V_AL}"] + regs_of(v(V_TMP, 4)))


def gen_xlane_max(p, src, dst):
    x0, x1 = v(V_X0), v(V_X0 + 1)
    p.valu("v_mov_b32", x0, src)
    p.valu("v_mov_b32", x1, src)
    p.op("v_permlane32_swap_b32", [x0, x1], [], cls="permlane", extra_r=regs_of(x0) + regs_of(x1))
    p.valu("v_max_f32", x0, x0, x1)
    p.valu("v_mov_b32", x1, x0)
    p.op("v_permlane16_swap_b32", [x0, x1], [], cls="permlane", extra_r=regs_of(x0) + regs_of(x1))
    p.valu("v_max_f32", dst, x0, x1)


def gen_init_stats(p):
    for tq in range(5):
        gen_xlane_max(p, v(V_TMAX + tq), v(V_MX + tq))
        p.valu("v_mul_f32", v(V_MC + tq), s(S_C), v(V_MX + tq))
        p.valu("v_sub_f32", v(V_MC + tq), 0, v(V_MC + tq))
        p.valu("v_add_f32", v(V_THR + tq), s(S_TC), v(V_MX + tq))


def gen_slow(i):
    p = Prog()
    p.label(f"L_slow{i}")
    p.raw("s_nop 7", "nop")
    p.raw("s_nop 7", "nop")
    for tq in range(5):
        gen_xlane_max(p, v(V_TMAX + tq), v(V_TMAX + tq))
        mo = v(V_MX + tq)
        p.valu("v_max_f32", v(V_TMAX + tq), mo, v(V_TMAX + tq))
        p.valu("v_sub_f32", v(V_AL), mo, v(V_TMAX + tq))
        p.valu("v_mul_f32", v(V_AL), s(S_C), v(V_AL))
        p.valu("v_exp_f32", v(V_AL), v(V_AL))
        p.valu("v_mov_b32", mo, v(V_TMAX + tq))
        p.valu("v_mul_f32", v(V_MC + tq), s(S_C), mo)
        p.valu("v_sub_f32", v(V_MC + tq), 0, v(V_MC + tq))
        p.valu("v_add_f32", v(V_THR + tq), s(S_TC), mo)
        for k in range(4):
            p.valu("v_mul_f32", v(V_L + tq * 4 + k), v(V_AL), v(V_L + tq * 4 + k))
        for t in range(8):
            for k in range(4):
                ar = a(A_O + (tq * 8 + t) * 4 + k)
                tmp = v(V_TMP + k)
                p.valu("v_accvgpr_read_b32", tmp, ar)
                p.valu("v_mul_f32", tmp, v(V_AL), tmp)
                p.valu("v_accvgpr_write_b32", ar, tmp)
    p.raw("s_nop 3", "nop")
    p.raw(f"s_branch L_ret{i}", "branch")
    return p


def gen_exp(p, i):
    b = i & 1
    for tq in range(5):
        x = V_S[b] + tq * 8
        for k in range(8):
            p.valu("v_fma_f32", v(x + k), v(x + k), s(S_C), v(V_MC + tq))
            p.valu("v_exp_f32", v(x + k), v(x + k))
        for k in range(4):
            p.valu("v_cvt_pk_bf16_f32", v(x + k), v(x + 2 * k), v(x + 2 * k + 1))


def gen_pv(p, i):
    b = i & 1
    slot = vslot(i)
    for t in range(8):
        fb = V_VF[vf_rot[0] % 4]
        vf_rot[0] += 1
        for u in range(2):
            p.ds_read("ds_read_b64_tr_b16", v(fb + 2 * u, 2), v(V_VADDR + t), slot * 8192 + u * 4096, res=[res(slot, u)])
        for tq in range(5):
            p.mfma(Oreg(tq, t), v(fb, 4), Preg(b, tq), 0 if i == 0 else Oreg(tq, t))
    for tq in range(5):
        p.mfma(Lreg(tq), v(V_ONES, 4), Preg(b, tq), 0 if i == 0 else Lreg(tq))


def gen_main():
    p = Prog()
    gen_qfrag(p)
    gen_qk(p, 0)
    gen_dma(p, "K", 2)
    gen_max(p, 0)
    gen_init_stats(p)
    for i in range(NBLK):
        gen_exp(p, i)
        if i + 1 < NBLK:
            gen_qk(p, i + 1)
        gen_pv(p, i)
        if i + 3 < NBLK:
            gen_dma(p, "K", i + 3)
        if i + 2 < NBLK:
            gen_dma(p, "V", i + 2)
        if i + 1 < NBLK:
            gen_max(p, i + 1)
            gen_check(p, i + 1)
            gen_stamp(p)
    return p


STAT_OFF = 32768


def wbase(w):
    return WBASE0 + w * WAVE_LDS


def unit_idx(w, tq, t):
    others = [x for x in range(8) if (x >> 1) != w]
    return tq * 6 + others.index(t)


def gen_epilogue_common():
    p = Prog()
    p.raw("s_nop 7", "nop")
    p.raw("s_nop 7", "nop")
    gen_stamp(p)
    E = V_S[0]
    p.valu("v_lshlrev_b32", v(E), 4, v(V_LANE))
    p.valu("v_lshlrev_b32", v(E + 1), 3, v(V_M))
    p.valu("v_add_u32", v(E + 1), s(S_WBASE), v(E + 1))
    for tq in range(5):
        p.valu("v_mov_b32", v(E + 2), v(V_MX + tq))
        p.valu("v_mov_b32", v(E + 3), v(V_L + tq * 4))
        p.ds_write("ds_write_b64", v(E + 1), v(E + 2, 2), STAT_OFF + tq * 128)
    for w in range(1, 4):
        p.raw(f"s_cmp_eq_u32 s{S_WAVE}, {w}", "salu", r=[f"s{S_WAVE}"], w=["scc"])
        p.raw(f"s_cbranch_scc1 L_epi{w}", "branch", r=["scc"])
    return p


def gen_epilogue_wave(w):
    p = Prog()
    p.label(f"L_epi{w}")
    E = V_S[0]
    vl16 = v(E)
    p.valu("v_add_u32", v(E + 4), wbase(w), vl16)
    for tq in range(5):
        for t in range(8):
            if (t >> 1) == w:
                continue
            p.ds_write("ds_write_b128", v(E + 4), Oreg(tq, t), unit_idx(w, tq, t) * 1024)
    p.raw("s_waitcnt lgkmcnt(0)", "waitcnt")
    p.raw("s_barrier", "barrier")
    ST = E + 8
    SC = E + 16
    for tq in range(5):
        for w2 in range(4):
            p.valu("v_lshlrev_b32", v(E + 5), 3, v(V_M))
            p.valu("v_add_u32", v(E + 5), wbase(w2) + STAT_OFF + tq * 128, v(E + 5))
            p.ds_read("ds_read_b64", v(ST + 2 * w2, 2), v(E + 5))
        M = v(E + 6)
        p.valu("v_max_f32", M, v(ST), v(ST + 2))
        p.valu("v_max3_f32", M, M, v(ST + 4), v(ST + 6))
        Ls = v(E + 7)
        for w2 in range(4):
            sc = v(SC + w2 * 5 + tq)
            p.valu("v_sub_f32", sc, v(ST + 2 * w2), M)
            p.valu("v_mul_f32", sc, s(S_C), sc)
            p.valu("v_exp_f32", sc, sc)
            if w2 == 0:
                p.valu("v_mul_f32", Ls, sc, v(ST + 1))
            else:
                p.valu("v_fma_f32", Ls, sc, v(ST + 2 * w2 + 1), Ls)
        p.valu("v_rcp_f32", Ls, Ls)
        for w2 in range(4):
            sc = v(SC + w2 * 5 + tq)
            p.valu("v_mul_f32", sc, sc, Ls)
    ACC = E + 40
    SRC = E + 44
    AD = E + 52
    for k, t in enumerate((2 * w, 2 * w + 1)):
        p.valu("v_and_b32", v(E + 5), 1, v(V_G))
        p.valu("v_xor_b32", v(E + 5), t, v(E + 5))
        p.valu("v_lshlrev_b32", v(E + 5), 3, v(E + 5))
        p.valu("v_lshl_add_u32", v(E + 5), v(V_G), 6, v(E + 5))
        p.valu("v_lshl_add_u32", v(AD + k), v(V_M), 8, v(E + 5))
    cnt = 0
    for tq in range(5):
        for k, t in enumerate((2 * w, 2 * w + 1)):
            first = True
            for w2 in range(4):
                sc = v(SC + w2 * 5 + tq)
                src = SRC + 4 * (cnt % 2)
                cnt += 1
                if w2 == w:
                    for r in range(4):
                        p.valu("v_accvgpr_read_b32", v(src + r), a(A_O + (tq * 8 + t) * 4 + r))
                else:
                    p.valu("v_add_u32", v(E + 5), wbase(w2), vl16)
                    p.ds_read("ds_read_b128", v(src, 4), v(E + 5), unit_idx(w2, tq, t) * 1024)
                for r in range(4):
                    if first:
                        p.valu("v_mul_f32", v(ACC + r), sc, v(src + r))
                    else:
                        p.valu("v_fma_f32", v(ACC + r), sc, v(src + r), v(ACC + r))
                first = False
            p.valu("v_cvt_pk_bf16_f32", v(ACC), v(ACC), v(ACC + 1))
            p.valu("v_cvt_pk_bf16_f32", v(ACC + 1), v(ACC + 2), v(ACC + 3))
            p.salu("s_mov_b32", s(S_T[0]), tq * 4096, scc=False)
            p.op("buffer_store_dwordx2", [], [v(ACC, 2), v(AD + k), s(SRD_O, 4), s(S_T[0])], cls="vmem", mods="offen")
    p.raw("s_waitcnt vmcnt(0)", "waitcnt")
    if STAMP:
        stamp_n[0] = 10
        gen_stamp(p)
        p.raw("s_waitcnt vmcnt(0)", "waitcnt")
    p.raw("s_branch L_end", "branch")
    return p


def finish(seq, vm=None, lg=None):
    seq, vm, lg = insert_waitcnts(seq, vm, lg)
    seq = fix_hazards(seq)
    return seq, vm, lg


def main():
    out = []
    out.append(f"; @launch grid=(256,1,1) block=(256,1,1) lds={LDS_TOTAL}\n")
    out.append('.amdgcn_target "amdgcn-amd-amdhsa--gfx950"\n.text\n')
    out.append(f".globl {KNAME}\n.p2align 8\n.type {KNAME},@function\n{KNAME}:\n")
    pro = gen_prologue()
    seq = schedule(pro.insts, enable=False)
    seq, vm, lg = finish(seq)
    out.append(render(seq))
    mainp = gen_main()
    seq = schedule(mainp.insts, enable=SCHED, verbose=True)
    seq, vm, lg = finish(seq, vm, lg)
    out.append(render(seq))
    seq = schedule(gen_epilogue_common().insts, enable=False)
    seq = [Inst("s_waitcnt vmcnt(0) lgkmcnt(0)", "waitcnt")] + seq
    seq, _, _ = finish(seq)
    out.append(render(seq))
    for w in range(4):
        seq = schedule(gen_epilogue_wave(w).insts, enable=False)
        seq = [Inst("s_waitcnt lgkmcnt(0)", "waitcnt")] + seq
        lab = [i for i in seq if i.cls == "label"]
        rest = [i for i in seq if i.cls != "label"]
        seq, _, _ = finish(lab + rest)
        out.append(render(seq))
    for i in range(1, NBLK):
        seq = schedule(gen_slow(i).insts, enable=False)
        seq, _, _ = finish(seq)
        out.append(render(seq))
    out.append("L_end:\n    s_endpgm\n")
    out.append(f""".section .rodata,"a"
.p2align 6
.amdhsa_kernel {KNAME}
  .amdhsa_next_free_vgpr 512
  .amdhsa_next_free_sgpr 72
  .amdhsa_accum_offset 256
  .amdhsa_group_segment_fixed_size 0
  .amdhsa_kernarg_size 48
  .amdhsa_user_sgpr_count 2
  .amdhsa_user_sgpr_kernarg_segment_ptr 1
  .amdhsa_system_sgpr_workgroup_id_x 1
.end_amdhsa_kernel
""")
    dst = "standalone__gqa_softmax__near_ridge.s"
    for a_ in sys.argv[1:]:
        if a_.startswith("--out="):
            dst = a_[6:]
    open(dst, "w").write("".join(out))
    print("wrote", dst, "V_END", V_END)


if __name__ == "__main__":
    main()
```

```python
import sys, math, struct
sys.path.insert(0, "gen")
from asmlib import *

SCHED = "--nosched" not in sys.argv
STAMP = "--stamp" in sys.argv
stamp_n = [0]
KNAME = "standalone__gqa_softmax__near_ridge_kernel"

C_SCALE = math.log2(math.e) / math.sqrt(128.0)
T_LAZY = 8.0


def fbits(x):
    return struct.unpack("<I", struct.pack("<f", x))[0]


NBLK = 8
QBYTES = 20480
WAVE_LDS = 35840
Q_LDS = 0
WBASE0 = 20480
LDS_TOTAL = WBASE0 + 4 * WAVE_LDS

class Alloc:
    def __init__(self, start):
        self.p = start

    def get(self, n=1, al=1):
        self.p = (self.p + al - 1) // al * al
        b = self.p
        self.p += n
        return b


va = Alloc(1)
V_LANE = va.get()
V_G = va.get()
V_M = va.get()
V_T0 = va.get()
V_T1 = va.get()
V_T2 = va.get()
V_WAVE = va.get()
V_VOFF = va.get(4, 4)
V_KADDR = va.get(4, 4)
V_VADDR = va.get(8, 4)
V_ONES = va.get(4, 4)
V_L = va.get(20, 4)
V_MX = va.get(5)
V_MC = va.get(5)
V_THR = va.get(5)
V_TMAX = va.get(5)
V_X0 = va.get(2, 2)
V_AL = va.get(1)
V_TMP = va.get(4, 4)
V_S = [va.get(40, 4), va.get(40, 4)]
V_KF = [va.get(4, 4) for _ in range(4)]
V_VF = [va.get(4, 4) for _ in range(4)]
V_QAD = va.get(4, 4)
V_QD = va.get(1)
V_END = va.p
assert V_END <= 256, V_END
A_O = 0
A_Q = 160

S_PTR = 4
SRD_Q, SRD_K, SRD_V, SRD_O = 12, 16, 20, 24
S_WAVE, S_WBASE, S_C, S_TC, S_KEYB = 28, 29, 30, 31, 32
S_T = [33, 34, 35, 36, 37, 38, 39, 40, 41]
S_CMP = 44


def Oreg(tq, t):
    return a(A_O + (tq * 8 + t) * 4, 4)


def Qreg(tq, j):
    return a(A_Q + (tq * 4 + j) * 4, 4)


def Sreg(b, tq, u):
    return v(V_S[b] + tq * 8 + u * 4, 4)


def Preg(b, tq):
    return v(V_S[b] + tq * 8, 4)


def Lreg(tq):
    return v(V_L + tq * 4, 4)


def kslot(i):
    return 2 * (i & 1)


def vslot(i):
    return 2 * (i & 1) + 1


def res(slot, u):
    return f"S{slot}h{u}"


def gen_prologue():
    p = Prog()
    p.raw("s_cmp_ge_u32 s2, 256", "salu", r=["s2"], w=["scc"])
    p.raw("s_cbranch_scc1 L_end", "branch", r=["scc"])
    p.op("s_load_dwordx8", [s(4, 8)], [s(0, 2), 0], cls="sload")
    p.salu("s_and_b32", s(33), s(2), 7)
    p.salu("s_lshl_b32", s(33), s(33), 3)
    p.salu("s_lshr_b32", s(34), s(2), 5)
    p.salu("s_add_u32", s(33), s(33), s(34))
    p.salu("s_lshr_b32", s(34), s(2), 3)
    p.salu("s_and_b32", s(34), s(34), 3)
    p.salu("s_lshl_b32", s(35), s(33), 2)
    p.salu("s_add_u32", s(35), s(35), s(34))
    p.salu("s_mul_i32", s(36), s(35), QBYTES, scc=False)
    p.salu("s_lshl_b32", s(37), s(33), 18)
    p.valu("v_and_b32", v(V_LANE), 63, v(0))
    p.valu("v_lshrrev_b32", v(V_WAVE), 6, v(0))
    p.valu("v_lshrrev_b32", v(V_G), 4, v(V_LANE))
    p.valu("v_and_b32", v(V_M), 15, v(V_LANE))
    p.op("v_readfirstlane_b32", [s(S_WAVE)], [v(V_WAVE)])
    p.salu("s_mov_b32", s(S_C), hex(fbits(C_SCALE)), scc=False)
    p.salu("s_mov_b32", s(S_TC), hex(fbits(T_LAZY / C_SCALE)), scc=False)
    p.salu("s_mul_i32", s(S_WBASE), s(S_WAVE), WAVE_LDS, scc=False)
    p.salu("s_add_u32", s(S_WBASE), s(S_WBASE), WBASE0)
    p.salu("s_lshl_b32", s(S_KEYB), s(S_WAVE), 16)
    for n in range(4):
        p.valu("v_add_u32", v(V_T0), 4 * n, v(V_G))
        p.valu("v_and_b32", v(V_T0), 15, v(V_T0))
        p.valu("v_xor_b32", v(V_T0), v(V_M), v(V_T0))
        p.valu("v_lshlrev_b32", v(V_T0), 4, v(V_T0))
        p.valu("v_lshl_add_u32", v(V_VOFF + n), v(V_G), 8, v(V_T0))
    for j in range(4):
        p.valu("v_add_u32", v(V_T0), 4 * j, v(V_G))
        p.valu("v_xor_b32", v(V_T0), v(V_M), v(V_T0))
        p.valu("v_lshlrev_b32", v(V_T0), 4, v(V_T0))
        p.valu("v_lshl_add_u32", v(V_QAD + j), v(V_M), 8, v(V_T0))
        p.valu("v_add_u32", v(V_KADDR + j), s(S_WBASE), v(V_QAD + j))
    p.valu("v_lshrrev_b32", v(V_T0), 2, v(V_M))
    p.valu("v_lshl_add_u32", v(V_T0), v(V_G), 2, v(V_T0))
    p.valu("v_and_b32", v(V_T1), 3, v(V_LANE))
    p.valu("v_lshlrev_b32", v(V_T2), 2, v(V_T1))
    p.valu("v_xor_b32", v(V_T2), v(V_T2), v(V_T0))
    p.valu("v_lshlrev_b32", v(V_T2), 4, v(V_T2))
    p.valu("v_lshl_add_u32", v(V_T2), v(V_T0), 8, v(V_T2))
    p.valu("v_and_b32", v(V_T1), 1, v(V_T1))
    p.valu("v_lshl_add_u32", v(V_T2), v(V_T1), 3, v(V_T2))
    for t in range(8):
        cst = ((t >> 1) << 4) | ((t & 1) << 3)
        p.valu("v_xor_b32", v(V_T1), cst, v(V_T2))
        p.valu("v_add_u32", v(V_VADDR + t), s(S_WBASE), v(V_T1))
    for k in range(4):
        p.valu("v_mov_b32", v(V_ONES + k), "0x3f803f80")
    p.valu("v_lshl_add_u32", v(V_T0), v(V_WAVE), 2, v(V_G))
    p.valu("v_and_b32", v(V_T0), 15, v(V_T0))
    p.valu("v_xor_b32", v(V_T0), v(V_M), v(V_T0))
    p.valu("v_lshlrev_b32", v(V_T0), 4, v(V_T0))
    p.valu("v_lshl_add_u32", v(V_QD), v(V_G), 8, v(V_T0))
    p.raw("s_waitcnt lgkmcnt(0)", "waitcnt")
    for (srd, ptr, off, nb) in ((SRD_Q, 4, 36, QBYTES), (SRD_K, 6, 37, 262144), (SRD_V, 8, 37, 262144), (SRD_O, 10, 36, QBYTES)):
        p.salu("s_add_u32", s(srd), s(ptr), s(off))
        p.salu("s_addc_u32", s(srd + 1), s(ptr + 1), 0, extra_r=("scc",))
        p.salu("s_mov_b32", s(srd + 2), nb, scc=False)
        p.salu("s_mov_b32", s(srd + 3), "0x00020000", scc=False)
    if STAMP:
        p.op("s_load_dwordx2", [s(60, 2)], [s(0, 2), 40], cls="sload")
        p.raw("s_waitcnt lgkmcnt(0)", "waitcnt")
        p.salu("s_mov_b32", s(62), "0x10000000", scc=False)
        p.salu("s_mov_b32", s(63), "0x00020000", scc=False)
        p.salu("s_lshl_b32", s(58), s(2), 2)
        p.salu("s_add_u32", s(58), s(58), s(S_WAVE))
        p.salu("s_lshl_b32", s(58), s(58), 8)
        p.valu("v_mov_b32", "v253", s(58))
        gen_stamp(p)
    p.salu("s_lshl_b32", s(33), s(S_WAVE), 10)
    for k in range(5):
        p.salu("s_add_u32", s(34), s(33), 4096 * k)
        p.salu("s_mov_b32", "m0", s(34), scc=False)
        p.raw("s_nop 0", "nop")
        p.dma(v(V_QD), s(SRD_Q, 4), s(34), 0, ["Q"])
    for i in range(2):
        gen_dma(p, "K", i)
        gen_dma(p, "V", i)
    p.raw("s_waitcnt vmcnt(32)" if not STAMP else "s_waitcnt vmcnt(0)", "waitcnt")
    p.raw("s_barrier", "barrier")
    gen_stamp(p)
    return p


def gen_stamp(p):
    if not STAMP:
        return
    n = stamp_n[0]
    stamp_n[0] += 1
    p.raw("s_memtime s[56:57]", "salu", r=["scc"], w=["s56", "s57"])
    p.raw("s_waitcnt lgkmcnt(0)", "stampwait", r=["s56", "s57"], w=["s56", "s57"])
    p.raw("v_mov_b32 v254, s56", "valu", r=["s56"], w=["v254"])
    p.raw("v_mov_b32 v255, s57", "valu", r=["s57"], w=["v255"])
    p.raw(f"buffer_store_dwordx2 v[254:255], v253, s[60:63], 0 offen offset:{n*8}", "vmem", r=["v254", "v255", "v253"])


def gen_dma(p, which, i):
    slot = kslot(i) if which == "K" else vslot(i)
    srd = SRD_K if which == "K" else SRD_V
    for h in range(2):
        st = S_T[2 + (slot * 2 + h) % 6]
        p.salu("s_add_u32", s(st), s(S_KEYB), i * 8192 + h * 4096)
        p.salu("s_add_u32", "m0", s(S_WBASE), slot * 8192 + h * 4096)
        for n in range(4):
            p.dma(v(V_VOFF + n), s(srd, 4), s(st), n * 1024, [res(slot, h)])


def gen_qfrag(p):
    for tq in range(5):
        for j in range(4):
            p.ds_read("ds_read_b128", Qreg(tq, j), v(V_QAD + j), Q_LDS + tq * 4096, res=["Q"])


kf_rot = [0]
vf_rot = [0]


def gen_qk(p, i):
    b = i & 1
    slot = kslot(i)
    for u in range(2):
        for j in range(4):
            fr = v(V_KF[kf_rot[0] % 4], 4)
            kf_rot[0] += 1
            p.ds_read("ds_read_b128", fr, v(V_KADDR + j), slot * 8192 + u * 4096, res=[res(slot, u)])
            for tq in range(5):
                p.mfma(Sreg(b, tq, u), fr, Qreg(tq, j), 0 if j == 0 else Sreg(b, tq, u))


def gen_max(p, i):
    b = i & 1
    for tq in range(5):
        x = V_S[b] + tq * 8
        t = v(V_TMAX + tq)
        p.valu("v_max3_f32", t, v(x), v(x + 1), v(x + 2))
        p.valu("v_max3_f32", t, t, v(x + 3), v(x + 4))
        p.valu("v_max3_f32", t, t, v(x + 5), v(x + 6))
        p.valu("v_max_f32", t, t, v(x + 7))


def slow_regs():
    r = []
    for tq in range(5):
        r += [f"v{V_MX + tq}", f"v{V_MC + tq}", f"v{V_THR + tq}"] + regs_of(Lreg(tq))
    r += regs_of(a(A_O, 160))
    return r


def gen_check(p, i):
    for tq in range(5):
        p.op("v_cmp_gt_f32", [s(S_CMP + 2 * tq, 2)], [v(V_TMAX + tq), v(V_THR + tq)])
    for tq in range(1, 5):
        p.salu("s_or_b64", s(S_CMP, 2), s(S_CMP, 2), s(S_CMP + 2 * tq, 2))
    sr = slow_regs()
    p.raw(f"s_cbranch_scc1 L_slow{i}\nL_ret{i}:", "branch",
          r=["scc"] + sr + [f"v{V_TMAX + tq}" for tq in range(5)] + [f"v{V_X0}", f"v{V_X0 + 1}", f"v{V_AL}"] + regs_of(v(V_TMP, 4)),
          w=sr + [f"v{V_X0}", f"v{V_X0 + 1}", f"v{V_AL}"] + regs_of(v(V_TMP, 4)))


def gen_xlane_max(p, src, dst):
    x0, x1 = v(V_X0), v(V_X0 + 1)
    p.valu("v_mov_b32", x0, src)
    p.valu("v_mov_b32", x1, src)
    p.op("v_permlane32_swap_b32", [x0, x1], [], cls="permlane", extra_r=regs_of(x0) + regs_of(x1))
    p.valu("v_max_f32", x0, x0, x1)
    p.valu("v_mov_b32", x1, x0)
    p.op("v_permlane16_swap_b32", [x0, x1], [], cls="permlane", extra_r=regs_of(x0) + regs_of(x1))
    p.valu("v_max_f32", dst, x0, x1)


def gen_init_stats(p):
    for tq in range(5):
        gen_xlane_max(p, v(V_TMAX + tq), v(V_MX + tq))
        p.valu("v_mul_f32", v(V_MC + tq), s(S_C), v(V_MX + tq))
        p.valu("v_sub_f32", v(V_MC + tq), 0, v(V_MC + tq))
        p.valu("v_add_f32", v(V_THR + tq), s(S_TC), v(V_MX + tq))


def gen_slow(i):
    p = Prog()
    p.label(f"L_slow{i}")
    p.raw("s_nop 7", "nop")
    p.raw("s_nop 7", "nop")
    for tq in range(5):
        gen_xlane_max(p, v(V_TMAX + tq), v(V_TMAX + tq))
        mo = v(V_MX + tq)
        p.valu("v_max_f32", v(V_TMAX + tq), mo, v(V_TMAX + tq))
        p.valu("v_sub_f32", v(V_AL), mo, v(V_TMAX + tq))
        p.valu("v_mul_f32", v(V_AL), s(S_C), v(V_AL))
        p.valu("v_exp_f32", v(V_AL), v(V_AL))
        p.valu("v_mov_b32", mo, v(V_TMAX + tq))
        p.valu("v_mul_f32", v(V_MC + tq), s(S_C), mo)
        p.valu("v_sub_f32", v(V_MC + tq), 0, v(V_MC + tq))
        p.valu("v_add_f32", v(V_THR + tq), s(S_TC), mo)
        for k in range(4):
            p.valu("v_mul_f32", v(V_L + tq * 4 + k), v(V_AL), v(V_L + tq * 4 + k))
        for t in range(8):
            for k in range(4):
                ar = a(A_O + (tq * 8 + t) * 4 + k)
                tmp = v(V_TMP + k)
                p.valu("v_accvgpr_read_b32", tmp, ar)
                p.valu("v_mul_f32", tmp, v(V_AL), tmp)
                p.valu("v_accvgpr_write_b32", ar, tmp)
    p.raw("s_nop 3", "nop")
    p.raw(f"s_branch L_ret{i}", "branch")
    return p


def gen_exp(p, i):
    b = i & 1
    for tq in range(5):
        x = V_S[b] + tq * 8
        for k in range(8):
            p.valu("v_fma_f32", v(x + k), v(x + k), s(S_C), v(V_MC + tq))
            p.valu("v_exp_f32", v(x + k), v(x + k))
        for k in range(4):
            p.valu("v_cvt_pk_bf16_f32", v(x + k), v(x + 2 * k), v(x + 2 * k + 1))


def gen_pv(p, i):
    b = i & 1
    slot = vslot(i)
    for t in range(8):
        fb = V_VF[vf_rot[0] % 4]
        vf_rot[0] += 1
        for u in range(2):
            p.ds_read("ds_read_b64_tr_b16", v(fb + 2 * u, 2), v(V_VADDR + t), slot * 8192 + u * 4096, res=[res(slot, u)])
        for tq in range(5):
            p.mfma(Oreg(tq, t), v(fb, 4), Preg(b, tq), 0 if i == 0 else Oreg(tq, t))
    for tq in range(5):
        p.mfma(Lreg(tq), v(V_ONES, 4), Preg(b, tq), 0 if i == 0 else Lreg(tq))


def gen_main():
    p = Prog()
    gen_qfrag(p)
    gen_qk(p, 0)
    gen_dma(p, "K", 2)
    gen_max(p, 0)
    gen_init_stats(p)
    for i in range(NBLK):
        gen_exp(p, i)
        if i + 1 < NBLK:
            gen_qk(p, i + 1)
        gen_pv(p, i)
        if i + 3 < NBLK:
            gen_dma(p, "K", i + 3)
        if i + 2 < NBLK:
            gen_dma(p, "V", i + 2)
        if i + 1 < NBLK:
            gen_max(p, i + 1)
            gen_check(p, i + 1)
            gen_stamp(p)
    return p


STAT_OFF = 35072


def wbase(w):
    return WBASE0 + w * WAVE_LDS


def owner(tq, t):
    return tq if tq < 4 else (t >> 1)


def unit_idx(w, tq, t):
    lst = [(a_, b_) for a_ in range(5) for b_ in range(8) if owner(a_, b_) != w]
    return lst.index((tq, t))


def gen_epilogue_common():
    p = Prog()
    p.raw("s_nop 7", "nop")
    p.raw("s_nop 7", "nop")
    gen_stamp(p)
    E = V_S[0]
    p.valu("v_lshlrev_b32", v(E), 4, v(V_LANE))
    p.valu("v_lshlrev_b32", v(E + 1), 3, v(V_M))
    p.valu("v_add_u32", v(E + 1), s(S_WBASE), v(E + 1))
    for tq in range(5):
        p.valu("v_mov_b32", v(E + 2), v(V_MX + tq))
        p.valu("v_mov_b32", v(E + 3), v(V_L + tq * 4))
        p.ds_write("ds_write_b64", v(E + 1), v(E + 2, 2), STAT_OFF + tq * 128)
    for w in range(1, 4):
        p.raw(f"s_cmp_eq_u32 s{S_WAVE}, {w}", "salu", r=[f"s{S_WAVE}"], w=["scc"])
        p.raw(f"s_cbranch_scc1 L_epi{w}", "branch", r=["scc"])
    return p


def gen_epilogue_wave(w):
    E = V_S[0]
    vl16 = v(E)
    pa = Prog()
    pa.label(f"L_epi{w}")
    pa.valu("v_add_u32", v(E + 4), wbase(w), vl16)
    for tq in range(5):
        for t in range(8):
            if owner(tq, t) == w:
                continue
            pa.ds_write("ds_write_b128", v(E + 4), Oreg(tq, t), unit_idx(w, tq, t) * 1024)
    p = Prog()
    AS = E + 5
    AR = E + 56
    AS4 = E + 12
    p.valu("v_lshlrev_b32", v(AS), 3, v(V_M))
    for w2 in range(4):
        p.valu("v_add_u32", v(AS4 + w2), wbase(w2), v(AS))
    for w2 in range(4):
        if w2 != w:
            p.valu("v_add_u32", v(AR + w2), wbase(w2), vl16)
    ST = E + 60
    SC = E + 16
    for tq in range(5):
        for w2 in range(4):
            p.ds_read("ds_read_b64", v(ST + (tq * 4 + w2) * 2, 2), v(AS4 + w2), STAT_OFF + tq * 128)
    for tq in range(5):
        st = ST + tq * 8
        M = v(E + 6)
        Ls = v(E + 7)
        p.valu("v_max_f32", M, v(st), v(st + 2))
        p.valu("v_max3_f32", M, M, v(st + 4), v(st + 6))
        for w2 in range(4):
            sc = v(SC + w2 * 5 + tq)
            p.valu("v_sub_f32", sc, v(st + 2 * w2), M)
            p.valu("v_mul_f32", sc, s(S_C), sc)
            p.valu("v_exp_f32", sc, sc)
            if w2 == 0:
                p.valu("v_mul_f32", Ls, sc, v(st + 1))
            else:
                p.valu("v_fma_f32", Ls, sc, v(st + 2 * w2 + 1), Ls)
        p.valu("v_rcp_f32", Ls, Ls)
        for w2 in range(4):
            sc = v(SC + w2 * 5 + tq)
            p.valu("v_mul_f32", sc, sc, Ls)
    IMG = wbase(w) + 30 * 1024
    AW = E + 8
    p.valu("v_mul_u32_u24", v(AW), 272, v(V_M))
    p.valu("v_lshl_add_u32", v(AW), v(V_G), 6, v(AW))
    p.valu("v_add_u32", v(AW), IMG, v(AW))
    AWT = E + 116
    p.valu("v_and_b32", v(E + 10), 1, v(V_G))
    for t in range(8):
        p.valu("v_xor_b32", v(AWT + t), t, v(E + 10))
        p.valu("v_lshl_add_u32", v(AWT + t), v(AWT + t), 3, v(AW))
    AD4 = E + 9
    p.valu("v_lshlrev_b32", v(AD4), 8, v(V_M))
    p.valu("v_lshl_add_u32", v(AD4), v(V_G), 6, v(AD4))
    p.valu("v_add_u32", v(AD4), 64 * 256 + 16 * w, v(AD4))
    bufs = [V_KF[0] + 4 * i for i in range(8)] + [E + 100 + 4 * i for i in range(4)]
    ACCS = [E + 40, E + 44, E + 48, E + 52]
    cnt = 0
    un = 0
    units = [(w, t) for t in range(8)] + [(4, 2 * w), (4, 2 * w + 1)]
    T4 = E + 124
    for (tq, t) in units:
        ACC = ACCS[un % 4]
        un += 1
        first = True
        for w2 in range(4):
            sc = v(SC + w2 * 5 + tq)
            src = bufs[cnt % len(bufs)]
            cnt += 1
            if w2 == w:
                for r in range(4):
                    p.valu("v_accvgpr_read_b32", v(src + r), a(A_O + (tq * 8 + t) * 4 + r))
            else:
                p.ds_read("ds_read_b128", v(src, 4), v(AR + w2), unit_idx(w2, tq, t) * 1024)
            for r in range(4):
                if first:
                    p.valu("v_mul_f32", v(ACC + r), sc, v(src + r))
                else:
                    p.valu("v_fma_f32", v(ACC + r), sc, v(src + r), v(ACC + r))
            first = False
        if tq < 4:
            p.valu("v_cvt_pk_bf16_f32", v(ACC), v(ACC), v(ACC + 1))
            p.valu("v_cvt_pk_bf16_f32", v(ACC + 1), v(ACC + 2), v(ACC + 3))
            p.ds_write("ds_write_b64", v(AWT + t), v(ACC, 2), 0, res=["IMG"])
        else:
            k = t & 1
            p.valu("v_cvt_pk_bf16_f32", v(T4 + 2 * k), v(ACC), v(ACC + 1))
            p.valu("v_cvt_pk_bf16_f32", v(T4 + 2 * k + 1), v(ACC + 2), v(ACC + 3))
    p.valu("v_and_b32", v(E + 10), 1, v(V_G))
    p.op("v_cmp_eq_u32", ["vcc"], [1, v(E + 10)])
    O4 = E + 128
    for k in range(2):
        p.op("v_cndmask_b32", [v(O4 + k)], [v(T4 + k), v(T4 + 2 + k), "vcc"])
        p.op("v_cndmask_b32", [v(O4 + 2 + k)], [v(T4 + 2 + k), v(T4 + k), "vcc"])
    p.op("buffer_store_dwordx4", [], [v(O4, 4), v(AD4), s(SRD_O, 4), 0], cls="vmem", mods="offen")
    AI = E + 132
    p.valu("v_mul_u32_u24", v(AI), 272, v(V_G))
    p.valu("v_lshl_add_u32", v(AI), v(V_M), 4, v(AI))
    p.valu("v_add_u32", v(AI), IMG, v(AI))
    AO = E + 133
    p.valu("v_lshlrev_b32", v(AO), 4, v(V_LANE))
    RB = E + 136
    for n in range(4):
        p.ds_read("ds_read_b128", v(RB + 4 * n, 4), v(AI), n * 4 * 272, res=["IMG"])
        p.salu("s_mov_b32", s(S_T[n]), w * 4096 + n * 1024, scc=False)
        p.op("buffer_store_dwordx4", [], [v(RB + 4 * n, 4), v(AO), s(SRD_O, 4), s(S_T[n])], cls="vmem", mods="offen")
    return pa, p


def finish(seq, vm=None, lg=None):
    seq, vm, lg = insert_waitcnts(seq, vm, lg)
    seq = fix_hazards(seq)
    return seq, vm, lg


def main():
    out = []
    out.append(f"; @launch grid=(256,1,1) block=(256,1,1) lds={LDS_TOTAL}\n")
    out.append('.amdgcn_target "amdgcn-amd-amdhsa--gfx950"\n.text\n')
    out.append(f".globl {KNAME}\n.p2align 8\n.type {KNAME},@function\n{KNAME}:\n")
    pro = gen_prologue()
    seq = schedule(pro.insts, enable=False)
    seq, vm, lg = finish(seq)
    out.append(render(seq))
    mainp = gen_main()
    seq = schedule(mainp.insts, enable=SCHED, verbose=True)
    seq, vm, lg = finish(seq, vm, lg)
    out.append(render(seq))
    seq = schedule(gen_epilogue_common().insts, enable=False)
    seq = [Inst("s_waitcnt vmcnt(0) lgkmcnt(0)", "waitcnt")] + seq
    seq, _, _ = finish(seq)
    out.append(render(seq))
    for w in range(4):
        pa, pb = gen_epilogue_wave(w)
        seq = schedule(pa.insts, enable=False)
        seq = seq + [Inst("s_waitcnt lgkmcnt(0)", "waitcnt")]
        if STAMP:
            ps = Prog(); stamp_n[0] = 11; gen_stamp(ps); seq += ps.insts
        seq += [Inst("s_barrier", "barrier")]
        if STAMP:
            ps = Prog(); stamp_n[0] = 12; gen_stamp(ps); seq += ps.insts
        seq, _, _ = finish(seq)
        out.append(render(seq))
        seq = schedule(pb.insts, enable=SCHED)
        tail = []
        if STAMP:
            ps = Prog(); stamp_n[0] = 13; gen_stamp(ps); tail += ps.insts
        tail += [Inst("s_waitcnt vmcnt(0)", "waitcnt")]
        if STAMP:
            ps = Prog()
            stamp_n[0] = 10
            gen_stamp(ps)
            tail += ps.insts + [Inst("s_waitcnt vmcnt(0)", "waitcnt")]
        seq = seq + tail + [Inst("s_branch L_end", "branch")]
        seq, _, _ = finish(seq)
        out.append(render(seq))
    for i in range(1, NBLK):
        seq = schedule(gen_slow(i).insts, enable=False)
        seq, _, _ = finish(seq)
        out.append(render(seq))
    out.append("L_end:\n    s_endpgm\n")
    out.append(f""".section .rodata,"a"
.p2align 6
.amdhsa_kernel {KNAME}
  .amdhsa_next_free_vgpr 512
  .amdhsa_next_free_sgpr 72
  .amdhsa_accum_offset 256
  .amdhsa_group_segment_fixed_size 0
  .amdhsa_kernarg_size 48
  .amdhsa_user_sgpr_count 2
  .amdhsa_user_sgpr_kernarg_segment_ptr 1
  .amdhsa_system_sgpr_workgroup_id_x 1
.end_amdhsa_kernel
""")
    dst = "standalone__gqa_softmax__near_ridge.s"
    for a_ in sys.argv[1:]:
        if a_.startswith("--out="):
            dst = a_[6:]
    open(dst, "w").write("".join(out))
    print("wrote", dst, "V_END", V_END)


if __name__ == "__main__":
    main()
```
